```python
import torch

def _softmax(x, axis=-1):
    return torch.softmax(x, dim=axis)
def _gelu(x):
    return torch.nn.functional.gelu(x, approximate="tanh")
def _silu(x):
    return torch.nn.functional.silu(x)
def _sigmoid(x):
    return torch.sigmoid(x)
def _layernorm(x, axis=-1, eps=1e-5):
    m = x.mean(dim=axis, keepdim=True)
    v = x.var(dim=axis, keepdim=True, unbiased=False)
    return (x - m) / torch.sqrt(v + eps)
def _scatter_add(tgt, idx, src, axis=0):
    return tgt.clone().index_add_(axis, idx, src)
def _segment_sum(src, seg, n):
    out = torch.zeros((n,) + src.shape[1:], dtype=src.dtype)
    return out.index_add_(0, seg, src)
def _pad(x, pw):
    flat = tuple(v for pair in reversed(pw) for v in pair)
    return torch.nn.functional.pad(x, flat)

kernel_name = 'recurrent_scan__spectral_fnet__glu_gated_swiglu__prompt'

def setup_inputs():

    _w = (lambda a: (lambda t: t.to(torch.bfloat16) if t.is_floating_point() else t)(torch.as_tensor(a)))
    def _A_setup():
        B, S, D = 1, 2048, 512
        ns = torch.arange(S)[:, None] * torch.arange(S)[None, :]
        nd = torch.arange(D)[:, None] * torch.arange(D)[None, :]
        Ws_re = torch.cos(-2.0 * torch.pi * ns / S).to(float)
        Ws_im = torch.sin(-2.0 * torch.pi * ns / S).to(float)
        Wd_re = torch.cos(-2.0 * torch.pi * nd / D).to(float)
        Wd_im = torch.sin(-2.0 * torch.pi * nd / D).to(float)
        return {
            "x": _w((lambda *s: torch.randn(*s, dtype=torch.bfloat16) * 0.05)(B, S, D)),
            "dft_seq_re": _w(Ws_re),
            "dft_seq_im": _w(Ws_im),
            "dft_hid_re": _w(Wd_re),
            "dft_hid_im": _w(Wd_im),
        }
    _A_in = _A_setup()

    def _B_setup():
        B, S, D, F = 1, 2048, 512, 1376
        return {
            "x": _w((lambda *s: torch.randn(*s, dtype=torch.bfloat16) * 0.05)(B, S, D)),
            "w1": _w((lambda *s: torch.randn(*s, dtype=torch.bfloat16) * 0.05)(D, F) * (2.0 / D) ** 0.5),
            "w3": _w((lambda *s: torch.randn(*s, dtype=torch.bfloat16) * 0.05)(D, F) * (2.0 / D) ** 0.5),
            "w2": _w((lambda *s: torch.randn(*s, dtype=torch.bfloat16) * 0.05)(F, D) * (2.0 / F) ** 0.5),
        }
    _B_in = _B_setup()

    return {
        "A_x": _A_in["x"],
        "A_dft_seq_re": _A_in["dft_seq_re"],
        "A_dft_seq_im": _A_in["dft_seq_im"],
        "A_dft_hid_re": _A_in["dft_hid_re"],
        "A_dft_hid_im": _A_in["dft_hid_im"],
        "B_x": _B_in["x"],
        "B_w1": _B_in["w1"],
        "B_w3": _B_in["w3"],
        "B_w2": _B_in["w2"],
    }

def reference(A_x, A_dft_seq_re, A_dft_seq_im, A_dft_hid_re, A_dft_hid_im, B_x, B_w1, B_w3, B_w2):
    def _A_ref(x, dft_seq_re, dft_seq_im, dft_hid_re, dft_hid_im):
        a = torch.einsum("bsd,ed->bse", x, dft_hid_re)
        b = torch.einsum("bsd,ed->bse", x, dft_hid_im)
        y = torch.einsum("ts,bse->bte", dft_seq_re, a) - torch.einsum("ts,bse->bte", dft_seq_im, b)
        return y

    def _B_ref(x, w1, w3, w2):
        gate = torch.einsum("bsd,df->bsf", x, w1)
        up = torch.einsum("bsd,df->bsf", x, w3)
        h = _silu(gate) * up
        out = torch.einsum("bsf,fd->bsd", h, w2)
        return out

    x = A_x
    xn = _layernorm(x, axis=-1)
    s = _A_ref(xn, A_dft_seq_re, A_dft_seq_im, A_dft_hid_re, A_dft_hid_im)
    g = _silu(_B_ref(xn, B_w1, B_w3, B_w2))
    return x + s * g
```

```python
import sys
NAME = "recurrent_scan__spectral_fnet__glu_gated_swiglu__prompt"
HSTRIDE = 86 * 2048
ZOFF = 0x600000
FOFF = 0x800000
WSBYTES = 0x801000
TOFF = 0x900000
WREG = 40960
BIG = 0x40000000
LOG2E = 0x3fb8aa3b

class E:
    def __init__(s):
        s.L = []; s.vm = []; s.lg = []
    def __call__(s, t): s.L.append(t)
    def vmem(s, t, tag=None): s.L.append(t); s.vm.append(tag)
    def ds(s, t, tag=None): s.L.append(t); s.lg.append(tag)
    def _cnt(s, q, tag):
        idx = [i for i, x in enumerate(q) if x == tag]
        if not idx: return None
        return len(q) - 1 - idx[-1]
    def wait_vm(s, tag):
        n = s._cnt(s.vm, tag)
        if n is None: return
        assert n <= 63, n
        s.L.append(f"s_waitcnt vmcnt({n})"); s.vm = s.vm[len(s.vm) - n:] if n else []
    def wait_lg(s, tag):
        n = s._cnt(s.lg, tag)
        if n is None: return
        n = min(n, 15)
        s.L.append(f"s_waitcnt lgkmcnt({n})"); s.lg = s.lg[len(s.lg) - n:] if n else []
    def wait_vm0(s): s.L.append("s_waitcnt vmcnt(0)"); s.vm = []
    def wait_lg0(s): s.L.append("s_waitcnt lgkmcnt(0)"); s.lg = []
    def run(s, item):
        if callable(item): item()
        else: s.L.append(item)
    def weave(s, mf, fill, lead=0):
        n = len(mf); k = len(fill); pos = 0
        for i, m in enumerate(mf):
            s.L.append(m)
            end = (k * (i + 1)) // n
            while pos < end:
                s.run(fill[pos]); pos += 1

def vr(b, n=4): return f"v[{b}:{b+n-1}]"
def ar(b, n=4): return f"a[{b}:{b+n-1}]"

SX, SDR, SDI, SW1, SW3, SW2, SOUT, SDBG, SWS, SLO = 4, 8, 12, 16, 20, 24, 28, 32, 36, 40
sW, sRT, sCS, sRHO, sLB, sT0, sT1, sT2, sT3, sXB, sBB, sP = 48, 49, 50, 51, 52, 53, 54, 55, 56, 57, 58, 59
sT1i, sNT, sROT, sKB, sKC, sHB, sONE, sLBB, sHST, sFL, sZB, sW2B = 60, 61, 62, 63, 64, 65, 66, 67, 68, 69, 70, 71
sEX = 72
sMK = 74
def srd(n): return f"s[{n}:{n+3}]"

def gen(stamps=False, depth=2):
    e = E()
    nst = [0]
    def stamp():
        if stamps:
            e(f"s_memtime s[{80+2*nst[0]}:{81+2*nst[0]}]"); nst[0] += 1
    e("; @launch grid=(256,1,1) block=(256,1,1) lds=163840")
    e('.amdgcn_target "amdgcn-amd-amdhsa--gfx950"\n.text')
    e(f".globl {NAME}_kernel\n.p2align 8\n.type {NAME}_kernel,@function\n{NAME}_kernel:")
    e("s_cmp_ge_u32 s2, 256\ns_cbranch_scc1 Lend")
    if stamps: e("s_memrealtime s[78:79]")
    stamp()
    e("s_load_dwordx2 s[4:5], s[0:1], 0")
    e("s_load_dwordx2 s[8:9], s[0:1], 24\ns_load_dwordx2 s[12:13], s[0:1], 32")
    e("s_load_dwordx2 s[16:17], s[0:1], 48\ns_load_dwordx2 s[20:21], s[0:1], 56\ns_load_dwordx2 s[24:25], s[0:1], 64")
    e("s_load_dwordx2 s[28:29], s[0:1], 72\ns_load_dwordx2 s[32:33], s[0:1], 80\ns_load_dwordx2 s[36:37], s[0:1], 88")
    e("v_lshrrev_b32 v1, 6, v0\nv_and_b32 v0, 63, v0")
    e(f"v_readfirstlane_b32 s{sW}, v1")
    for r, nb in ((SX, 2097152), (SDR, 524288), (SDI, 524288), (SW1, 512*2752), (SW3, 512*2752), (SW2, 1376*1024), (SOUT, 2097152), (SDBG, 256), (SWS, (TOFF + 0x10000) if stamps else WSBYTES)):
        e(f"s_mov_b32 s{r+2}, {nb}\ns_mov_b32 s{r+3}, 0x20000")
    e(f"s_and_b32 s{sT0}, s2, 7\ns_lshr_b32 s{sT1}, s2, 3")
    e(f"s_and_b32 s{sT2}, s{sT1}, 7\ns_lshr_b32 s{sT3}, s{sT1}, 3")
    e(f"s_and_b32 s{sRT}, s{sT0}, 1\ns_lshl_b32 s{sRT}, s{sRT}, 3\ns_add_u32 s{sRT}, s{sRT}, s{sT2}")
    e(f"s_lshr_b32 s{sCS}, s{sT0}, 1\ns_lshl_b32 s{sCS}, s{sCS}, 2\ns_add_u32 s{sCS}, s{sCS}, s{sT3}")
    e(f"s_lshl_b32 s{sRHO}, s{sT3}, 1\ns_add_u32 s{sRHO}, s{sRHO}, s{sT2}\ns_and_b32 s{sRHO}, s{sRHO}, 7")
    e(f"s_lshl_b32 s{sT1i}, s{sT0}, 2\ns_add_u32 s{sT1i}, s{sT1i}, s{sT3}\ns_mov_b32 s{sNT}, s{sT2}")
    e(f"s_mul_i32 s{sROT}, s{sRHO}, 11\ns_lshr_b32 s{sROT}, s{sROT}, 2")
    e(f"s_mul_i32 s{sLB}, s{sW}, {WREG}")
    e(f"s_and_b32 s{sT0}, s{sW}, 1\ns_lshr_b32 s{sT1}, s{sW}, 1\ns_lshl_b32 s{sT2}, s{sRT}, 1\ns_add_u32 s{sT2}, s{sT2}, s{sT0}")
    e(f"s_lshl_b32 s{sT3}, s{sT1}, 5\ns_add_u32 s{sXB}, s{sT2}, s{sT3}\ns_lshl_b32 s{sXB}, s{sXB}, 10")
    e(f"s_mul_i32 s{sHST}, s{sT2}, {HSTRIDE}\ns_lshl_b32 s{sT3}, s{sT1}, 10\ns_add_u32 s{sHST}, s{sHST}, s{sT3}")
    e(f"s_mov_b32 s{sONE}, 0x3f803f80")
    e("v_lshrrev_b32 v6, 4, v0\nv_and_b32 v7, 7, v0\nv_xor_b32 v2, v7, v6\nv_xor_b32 v3, 4, v2")
    e("v_lshlrev_b32 v2, 4, v2\nv_lshlrev_b32 v3, 4, v3\nv_lshrrev_b32 v6, 3, v0")
    e("v_lshl_add_u32 v4, v6, 16, v2\nv_lshl_add_u32 v5, v6, 16, v3")
    e("s_waitcnt lgkmcnt(0)")
    e(f"s_or_b32 s{sT0}, s2, s{sW}\ns_cmp_lg_u32 s{sT0}, 0\ns_cbranch_scc1 Lnoinit1")
    e("v_mov_b32 v8, 0\nv_mov_b32 v9, 0\nv_mov_b32 v10, 0\nv_mov_b32 v11, 0\nv_lshlrev_b32 v12, 4, v0")
    e(f"s_mov_b32 s{sT1}, {FOFF}")
    for i in range(4): e(f"buffer_store_dwordx4 v[8:11], v12, {srd(SWS)}, s{sT1} offen offset:{i*1024} sc1")
    e("Lnoinit1:")
    for j in range(8):
        e(f"s_add_u32 s{sT0}, s{sRHO}, {j}\ns_and_b32 s{sT0}, s{sT0}, 7\ns_lshl_b32 s{sT0}, s{sT0}, 7\ns_add_u32 s{sT0}, s{sT0}, s{sXB}")
        for i in range(4):
            e(f"s_add_u32 m0, s{sLB}, {8192 + j*4096 + i*1024}")
            if i: e(f"s_add_u32 s{sT0}, s{sT0}, {8*65536}")
            else: e("s_nop 0")
            e.vmem(f"buffer_load_dwordx4 v{4 + (i & 1)}, {srd(SX)}, s{sT0} offen lds", ("x", j))
    stamp()
    e(f"s_or_b32 s{sT0}, s2, s{sW}\ns_cmp_lg_u32 s{sT0}, 0\ns_cbranch_scc1 Lnoinit2")
    e("s_waitcnt vmcnt(0)\nv_mov_b32 v8, 1\nv_mov_b32 v12, 0")
    e(f"s_mov_b64 s[{sEX}:{sEX+1}], exec\ns_mov_b64 exec, 1")
    e(f"buffer_store_dword v8, v12, {srd(SDBG)}, 0 offen sc1")
    e(f"s_mov_b64 exec, s[{sEX}:{sEX+1}]")
    e("Lnoinit2:")
    e("v_and_b32 v6, 31, v0\nv_lshrrev_b32 v7, 5, v0\nv_bfe_u32 v12, v0, 1, 3\nv_xor_b32 v12, v12, v7\nv_lshlrev_b32 v6, 7, v6")
    for s in range(4):
        e(f"v_xor_b32 v13, {2*s}, v12\nv_lshl_add_u32 v{8+s}, v13, 4, v6")
    for s in range(4):
        e(f"v_add_u32 v{12+s}, s{sLB}, v{8+s}")
    e("v_lshrrev_b32 v16, 2, v0\nv_and_b32 v17, 3, v0\nv_lshlrev_b32 v17, 4, v17")
    e(f"s_cmp_ge_u32 s{sCS}, 14\ns_cbranch_scc1 Lspec")

    def stats_chunk(j):
        for s in range(4):
            e.ds(f"ds_read_b128 {vr(128+16*j+4*s)}, v{12+s} offset:{8192+j*4096}", ("xr", j))
    def stats_acc(j):
        e.wait_lg(("xr", j))
        for q in range(16):
            r = 128 + 16*j + q
            e(f"v_dot2_f32_bf16 v{24+(q&3)}, v{r}, v{r}, v{24+(q&3)}")
            e(f"v_dot2_f32_bf16 v{28+(q&3)}, v{r}, s{sONE}, v{28+(q&3)}")
    def stats_fin():
        e("s_nop 2\nv_add_f32 v24, v24, v25\nv_add_f32 v26, v26, v27\nv_add_f32 v28, v28, v29\nv_add_f32 v30, v30, v31")
        e("v_add_f32 v24, v24, v26\nv_add_f32 v28, v28, v30\nv_mov_b32 v25, v24\nv_mov_b32 v29, v28\ns_nop 1")
        e("v_permlane32_swap_b32 v24, v25\nv_permlane32_swap_b32 v28, v29\ns_nop 1")
        e("v_add_f32 v24, v24, v25\nv_add_f32 v28, v28, v29")
        e("v_mul_f32 v28, 0x3b000000, v28\nv_mul_f32 v24, 0x3b000000, v24\nv_fma_f32 v24, -v28, v28, v24")
        e("v_max_f32 v24, 0, v24\nv_add_f32 v24, 0x3727c5ac, v24\nv_rsq_f32 v22, v24\ns_nop 0\nv_mul_f32 v23, v28, v22\nv_sub_f32 v23, 0, v23")
    def x_phase(after):
        for k in range(8): e(f"v_mov_b32 v{24+k}, 0")
        for j in range(8):
            e.wait_vm(("x", j))
            stats_chunk(j)
            if j:
                pass
            stats_acc(j)
            if j in after: after[j]()
        stats_fin()
    def w2_dma(j):
        def f0():
            e(f"s_add_u32 s{sT0}, s{sROT}, {j}\ns_sub_u32 s{sT1}, s{sT0}, 22\ns_cmp_ge_u32 s{sT0}, 22\ns_cselect_b32 s{sT0}, s{sT1}, s{sT0}")
            e(f"s_cmp_ge_u32 s{sT0}, s{sKC}\ns_cselect_b32 s{sT1}, {BIG}, 0\ns_lshl_b32 s{sT0}, s{sT0}, 14\ns_add_u32 s{sT0}, s{sT0}, s{sW2B}")
            e(f"s_add_u32 m0, s{sLB}, {24576 + (j&7)*2048}\ns_add_u32 s{sT0}, s{sT0}, s{sT1}")
            e.vmem(f"buffer_load_dwordx4 v20, {srd(SW2)}, s{sT0} offen lds", ("w2", j))
            e(f"s_add_u32 m0, s{sLB}, {24576 + (j&7)*2048 + 1024}\ns_xor_b32 s{sT0}, s{sT0}, 64")
            e.vmem(f"buffer_load_dwordx4 v20, {srd(SW2)}, s{sT0} offen lds", ("w2", j))
        return f0
    def p2_setup():
        e(f"s_mul_i32 s{sKB}, s{sW}, 22\ns_cmp_eq_u32 s{sW}, 3\ns_cselect_b32 s{sKB}, 65, s{sKB}\ns_cmp_ge_u32 s{sW}, 2\ns_cselect_b32 s{sKC}, 21, 22")
        e(f"s_lshl_b32 s{sW2B}, s{sKB}, 14\ns_lshl_b32 s{sT0}, s{sNT}, 7\ns_add_u32 s{sW2B}, s{sW2B}, s{sT0}")
        e(f"s_and_b32 s{sT0}, s{sW}, 1\ns_lshl_b32 s{sT0}, s{sT0}, 6\ns_add_u32 s{sW2B}, s{sW2B}, s{sT0}")
        e("v_lshl_add_u32 v20, v16, 10, v17")
    def silu_mul(g, p, t0, n):
        for i in range(n): e(f"v_mul_f32 v{t0+i}, 0xbfb8aa3b, v{g+i}")
        for i in range(n): e(f"v_exp_f32 v{t0+i}, v{t0+i}")
        for i in range(n): e(f"v_mul_f32 v{g+i}, v{g+i}, v{p+i}")
        for i in range(n): e(f"v_add_f32 v{t0+i}, 1.0, v{t0+i}")
        for i in range(n): e(f"v_rcp_f32 v{t0+i}, v{t0+i}")
        e("s_nop 0")
        for i in range(n): e(f"v_mul_f32 v{g+i}, v{g+i}, v{t0+i}")

    vm0 = list(e.vm)
    e("v_mul_u32_u24 v18, 2752, v16\nv_add_u32 v18, v18, v17")
    e(f"s_mul_i32 s{sBB}, s{sW}, {16*2752}\ns_mul_i32 s{sT0}, s{sCS}, 192\ns_add_u32 s{sBB}, s{sBB}, s{sT0}")
    def b_dma(c):
        out = []
        for m in range(2):
            for u in range(3):
                def f(m=m, u=u):
                    if m == 0 and u == 0:
                        e(f"s_add_u32 s{sLBB}, s{sRHO}, {c}\ns_and_b32 s{sLBB}, s{sLBB}, 7\ns_mul_i32 s{sLBB}, s{sLBB}, {64*2752}\ns_add_u32 s{sLBB}, s{sLBB}, s{sBB}")
                    e(f"s_add_u32 m0, s{sLB}, {(c&3)*6144 + (m*3+u)*1024 - 64*u}\ns_nop 0")
                    e.vmem(f"buffer_load_dwordx4 v18, {srd(SW3 if m else SW1)}, s{sLBB} offen offset:{64*u} lds", ("B", c))
                out.append(f)
        return out
    for f in b_dma(0): f()
    e("v_lshrrev_b32 v6, 5, v0\nv_bfe_u32 v7, v0, 2, 2\nv_lshl_add_u32 v6, v6, 3, v7\nv_lshlrev_b32 v6, 6, v6")
    e("v_bfe_u32 v7, v0, 4, 1\nv_lshl_add_u32 v6, v7, 5, v6\nv_and_b32 v7, 3, v0\nv_lshl_add_u32 v19, v7, 3, v6")
    e(f"v_add_u32 v21, {2*WREG}, v19")
    p2_setup()
    aft = {3: lambda: [f() for f in b_dma(1)]}
    if depth >= 3: aft[6] = lambda: [f() for f in b_dma(2)]
    x_phase(aft)
    stamp()
    def norm(n, t0):
        r = 128 + 4*n; o = []
        for q in range(4):
            o.append(f"v_lshlrev_b32 v{t0+2*q}, 16, v{r+q}")
            o.append(f"v_and_b32 v{t0+2*q+1}, 0xffff0000, v{r+q}")
        for q in range(8): o.append(f"v_fma_f32 v{t0+q}, v{t0+q}, v22, v23")
        for q in range(4): o.append(f"v_cvt_pk_bf16_f32 v{r+q}, v{t0+2*q}, v{t0+2*q+1}")
        return o
    def wreads(n):
        c, s = n >> 2, n & 3; o = []
        for t in (0, 3, 1, 4, 2, 5):
            for hf in range(2):
                off = (s & 1) * WREG + (c & 3) * 6144 + t * 1024 + hf * 256
                o.append(lambda t=t, hf=hf, off=off: e.ds(f"ds_read_b64_tr_b16 {ar((n&1)*24 + 4*t + 2*hf, 2)}, v{21 if s >= 2 else 19} offset:{off}", ("W", n)))
        return o
    for x in norm(0, 24): e(x)
    e.wait_vm(("B", 0)); e("s_barrier")
    for f in wreads(0): f()
    pend = []
    for n in range(32):
        c, s = n >> 2, n & 3
        if s == 0:
            if c + depth < 8: pend = b_dma(c + depth)
            else:
                k0 = (c + depth - 8) * (8 // depth + (1 if 8 % depth else 0))
                pend = [w2_dma(j) for j in range(k0, min(8, k0 + 8 // depth + (1 if 8 % depth else 0)))]
        e.wait_lg(("W", n))
        fill = []
        if n + 1 < 32:
            if s == 3:
                def sync(c=c):
                    e.wait_vm(("B", c + 1)); e("s_barrier")
                fill.append(sync)
            rd = wreads(n + 1); nm = norm(n + 1, 24)
            while rd or nm:
                if rd: fill.append(rd.pop(0))
                if nm: fill.append(nm.pop(0))
                if nm: fill.append(nm.pop(0))
        if s < 3:
            k = (len(pend) + (2 - s)) // (3 - s)
            ins = pend[:k]; pend = pend[k:]
            for q, f in enumerate(ins): fill.insert(min(len(fill), 4 + q * 12), f)
        mf = []
        for t in (0, 3, 1, 4, 2, 5):
            acc = 32 + 32 * (t % 3) + 16 * (t // 3)
            mf.append(f"v_mfma_f32_32x32x16_bf16 {vr(acc,16)}, {ar((n&1)*24 + 4*t)}, {vr(128+4*n)}, {vr(acc,16) if n else 0}")
        e.weave(mf, fill)
        if n + 1 < 32: e("s_nop 0")
    stamp()
    e("v_lshlrev_b32 v2, 4, v0\nv_mov_b32 v3, 0")
    e.vmem(f"buffer_load_dword v4, v3, {srd(SDBG)}, 0 offen sc1", "init")
    e(f"s_mul_i32 s{sT0}, s{sCS}, {6*2048}\ns_add_u32 s{sT0}, s{sT0}, s{sHST}\ns_nop 7")
    for u in range(3):
        g = 32 + 32 * u
        silu_mul(g, g + 16, 128, 16)
        for q in range(8): e(f"v_cvt_pk_bf16_f32 v{144+8*u+q}, v{g+2*q}, v{g+2*q+1}")
        e.vmem(f"buffer_store_dwordx4 {vr(144+8*u)}, v2, {srd(SWS)}, s{sT0} offen sc1")
        e.vmem(f"buffer_store_dwordx4 {vr(148+8*u)}, v2, {srd(SWS)}, s{sT0} offen offset:2048 sc1")
        if u < 2: e(f"s_add_u32 s{sT0}, s{sT0}, 4096")
    e(f"s_lshl_b32 s{sFL}, s{sRT}, 8\ns_lshl_b32 s{sT0}, s{sCS}, 2\ns_add_u32 s{sFL}, s{sFL}, s{sT0}\ns_mov_b64 s[{sMK}:{sMK+1}], 1")
    e("s_branch Lsignal")

    e.vm = list(vm0); e.lg = []
    nst_save = nst[0]; nst[0] -= (2 if stamps else 0)
    e("Lspec:")
    e(f"s_sub_u32 s{sP}, s{sCS}, 14")
    e("v_lshrrev_b32 v6, 3, v0\nv_lshl_add_u32 v18, v6, 11, v2\nv_lshl_add_u32 v19, v6, 11, v3")
    e(f"s_lshl_b32 s{sBB}, s{sW}, 6\ns_add_u32 s{sBB}, s{sBB}, s{sP}\ns_add_u32 s{sBB}, s{sBB}, 256\ns_lshl_b32 s{sBB}, s{sBB}, 10")
    DSLOT = [0, 16384, 24576, 32768]
    def d_dma(c):
        out = []
        for m in range(2):
            for i in range(4):
                def f(m=m, i=i):
                    if m == 0 and i == 0:
                        e(f"s_add_u32 s{sLBB}, s{sRHO}, {c}\ns_and_b32 s{sLBB}, s{sLBB}, 7\ns_lshl_b32 s{sLBB}, s{sLBB}, 7\ns_add_u32 s{sLBB}, s{sLBB}, s{sBB}")
                    e(f"s_add_u32 m0, s{sLB}, {DSLOT[c] + m*4096 + i*1024}\ns_add_u32 s{sT2}, s{sLBB}, {i*16*1024}")
                    e.vmem(f"buffer_load_dwordx4 v{18+(i&1)}, {srd(SDI if m else SDR)}, s{sT2} offen lds", ("D", c))
                out.append(f)
        return out
    for f in d_dma(0): f()
    e(f"s_bitcmp1_b32 s{sW}, 0\ns_cselect_b32 s{SLO}, s{SW3}, s{SW1}\ns_cselect_b32 s{SLO+1}, s{SW3+1}, s{SW1+1}\ns_mov_b32 s{SLO+2}, {512*2752}\ns_mov_b32 s{SLO+3}, 0x20000")
    e("v_lshrrev_b32 v6, 1, v0\nv_mul_u32_u24 v21, 2752, v6\nv_and_b32 v6, 1, v0\nv_lshl_add_u32 v21, v6, 4, v21")
    e(f"s_lshr_b32 s{sZB}, s{sW}, 1\ns_mul_i32 s{sZB}, s{sZB}, {32*2752}\ns_lshl_b32 s{sT0}, s{sP}, 5\ns_add_u32 s{sZB}, s{sZB}, s{sT0}\ns_add_u32 s{sZB}, s{sZB}, 2688")
    def l_dma(js):
        for j in js:
            e(f"s_add_u32 s{sT0}, s{sRHO}, {j}\ns_and_b32 s{sT0}, s{sT0}, 7\ns_mul_i32 s{sT0}, s{sT0}, {64*2752}")
            e(f"s_add_u32 m0, s{sLB}, {8192 + j*1024}\ns_add_u32 s{sT0}, s{sT0}, s{sZB}")
            e.vmem(f"buffer_load_dwordx4 v21, {srd(SLO)}, s{sT0} offen lds", ("L", j & 3))
    for T in range(4):
        for s in range(4): e(f"v_add_u32 v{32+4*T+s}, {T*WREG}, v{8+s}")
    e("v_lshrrev_b32 v6, 5, v0\nv_bfe_u32 v7, v0, 2, 2\nv_lshl_add_u32 v6, v6, 3, v7\nv_lshlrev_b32 v6, 5, v6")
    e(f"v_and_b32 v7, 3, v0\nv_lshl_add_u32 v6, v7, 3, v6\nv_bfe_u32 v7, v0, 4, 1\nv_mul_u32_u24 v7, {WREG}, v7\nv_add_u32 v64, v6, v7\nv_add_u32 v65, {2*WREG}, v64")
    e(f"s_cmp_eq_u32 s{sP}, 0\ns_cselect_b32 s{sT0}, 1.0, -1.0\nv_mov_b32 v66, s{sT0}")
    e("v_and_b32 v6, 31, v0\nv_cvt_f32_u32 v6, v6\nv_mul_f32 v6, 0x3d000000, v6\nv_lshrrev_b32 v7, 5, v0\nv_lshlrev_b32 v7, 2, v7\nv_cvt_f32_u32 v7, v7\nv_mul_f32 v7, v7, v6")
    for q in range(2):
        for j in range(8):
            e(f"v_mov_b32 v67, {float(16*q + 8*(j>>2) + (j&3))!r}\nv_fma_f32 v67, v67, v6, v7\nv_fract_f32 v67, v67\nv_cos_f32 v{68+j}, v67\nv_sin_f32 v{76+j}, v67")
        e("s_nop 0")
        for d in range(4):
            e(f"v_cvt_pk_bf16_f32 v{96+4*q+d}, v{68+2*d}, v{69+2*d}\nv_cvt_pk_bf16_f32 v{104+4*q+d}, v{76+2*d}, v{77+2*d}\nv_cvt_pk_bf16_f32 v{112+4*q+d}, -v{76+2*d}, -v{77+2*d}")
    p2_setup()
    x_phase({1: lambda: l_dma([0, 4, 1, 5, 2, 6, 3, 7]), 3: lambda: [f() for f in d_dma(1)]})
    stamp()
    def snorm(n):
        ra, rb, fo = 128 + 4*n, 128 + 4*(n+16), 120 + 4*(n & 1); o = []
        for b, r in ((68, ra), (76, rb)):
            for q in range(4):
                o.append(f"v_lshlrev_b32 v{b+2*q}, 16, v{r+q}")
                o.append(f"v_and_b32 v{b+2*q+1}, 0xffff0000, v{r+q}")
            for q in range(8): o.append(f"v_fma_f32 v{b+q}, v{b+q}, v22, v23")
            for q in range(4): o.append(f"v_cvt_pk_bf16_f32 v{r+q}, v{b+2*q}, v{b+2*q+1}")
        for q in range(8): o.append(f"v_fma_f32 v{68+q}, v{76+q}, v66, v{68+q}")
        for q in range(4): o.append(f"v_cvt_pk_bf16_f32 v{fo+q}, v{68+2*q}, v{69+2*q}")
        return o
    def sreads(n):
        c, s = n >> 2, n & 3; o = []
        for ab in range(2):
            for hf in range(2):
                off = 8192 + (c + 4*ab) * 1024 + (s & 1) * 512 + hf * 128
                o.append(lambda ab=ab, hf=hf, off=off: e.ds(f"ds_read_b64_tr_b16 {ar(192 + (n&1)*8 + 4*ab + 2*hf, 2)}, v{64 + (s>>1)} offset:{off}", ("W", n)))
        for T in range(4):
            for m in range(2):
                o.append(lambda T=T, m=m: e.ds(f"ds_read_b128 {ar(128 + (n&1)*32 + 8*T + 4*m)}, v{32+4*T+s} offset:{DSLOT[c] + m*4096}", ("W", n)))
        return o
    for x in snorm(0): e(x)
    e.wait_vm(("D", 0)); e.wait_vm(("L", 0)); e("s_barrier")
    for f in sreads(0): f()
    pend = []
    for n in range(16):
        c, s = n >> 2, n & 3
        if s == 0: pend = d_dma(c + 2) if c + 2 < 4 else []
        e.wait_lg(("W", n))
        fill = []
        if n + 1 < 16:
            if s == 3:
                def sync(c=c):
                    e.wait_vm(("D", c + 1)); e.wait_vm(("L", c + 1)); e("s_barrier")
                fill.append(sync)
            rd = sreads(n + 1); nm = snorm(n + 1)
            while rd or nm:
                if rd: fill.append(rd.pop(0))
                for _ in range(4):
                    if nm: fill.append(nm.pop(0))
        if s < 3:
            k = (len(pend) + (2 - s)) // (3 - s)
            ins = pend[:k]; pend = pend[k:]
            for q, f in enumerate(ins): fill.insert(min(len(fill), 4 + q * 16), f)
        mf = []
        fo = 120 + 4*(n & 1)
        for T in range(4):
            for m in range(2):
                acc = 32*T + 16*m
                mf.append(f"v_mfma_f32_32x32x16_bf16 {ar(acc,16)}, {vr(fo)}, {ar(128 + (n&1)*32 + 8*T + 4*m)}, {ar(acc,16) if n else 0}")
        mf.insert(0, f"v_mfma_f32_32x32x16_bf16 v[48:63], {ar(192 + (n&1)*8)}, {vr(128+4*n)}, {'v[48:63]' if n else 0}")
        mf.insert(5, f"v_mfma_f32_32x32x16_bf16 v[48:63], {ar(192 + (n&1)*8 + 4)}, {vr(128+4*(n+16))}, v[48:63]")
        e.weave(mf, fill)
        if n + 1 < 16: e("s_nop 0")
    stamp()
    e("s_barrier")
    for j in range(8): w2_dma(j)()
    e("v_lshlrev_b32 v2, 4, v0\nv_mov_b32 v3, 0")
    e.vmem(f"buffer_load_dword v4, v3, {srd(SDBG)}, 0 offen sc1", "init")
    e(f"v_add_u32 v5, s{sLB}, v2")
    silu_mul(48, 56, 68, 8)
    for q in range(4): e(f"v_cvt_pk_bf16_f32 v{84+q}, v{48+2*q}, v{49+2*q}")
    e(f"s_add_u32 s{sT0}, s{sP}, 84\ns_lshl_b32 s{sT0}, s{sT0}, 11\ns_add_u32 s{sT0}, s{sT0}, s{sHST}")
    e.vmem(f"buffer_store_dwordx4 v[84:87], v2, {srd(SWS)}, s{sT0} offen sc1")
    for T in range(4):
        zb = 128 + 64 * (T & 1)
        for i in range(32): e(f"v_accvgpr_read_b32 v{32+i}, a{32*T+i}")
        for i in range(16): e(f"v_cvt_pk_bf16_f32 v{zb+i}, v{32+2*i}, v{33+2*i}")
        e("s_nop 1")
        zr, zi = zb + 16, zb + 32
        e(f"v_mfma_f32_32x32x16_bf16 {vr(zr,16)}, v[96:99], {vr(zb)}, 0")
        e(f"v_mfma_f32_32x32x16_bf16 {vr(zi,16)}, v[96:99], {vr(zb+8)}, 0")
        e(f"v_mfma_f32_32x32x16_bf16 {vr(zr,16)}, v[100:103], {vr(zb+4)}, {vr(zr,16)}")
        e(f"v_mfma_f32_32x32x16_bf16 {vr(zi,16)}, v[100:103], {vr(zb+12)}, {vr(zi,16)}")
        e(f"v_mfma_f32_32x32x16_bf16 {vr(zr,16)}, v[104:107], {vr(zb+8)}, {vr(zr,16)}")
        e(f"v_mfma_f32_32x32x16_bf16 {vr(zi,16)}, v[112:115], {vr(zb)}, {vr(zi,16)}")
        e(f"v_mfma_f32_32x32x16_bf16 {vr(zr,16)}, v[108:111], {vr(zb+12)}, {vr(zr,16)}")
        e(f"v_mfma_f32_32x32x16_bf16 {vr(zi,16)}, v[116:119], {vr(zb+4)}, {vr(zi,16)}")
        def fin(T):
            zb = 128 + 64 * (T & 1)
            for i in range(16): e(f"v_cvt_pk_bf16_f32 v{zb+48+i}, v{zb+16+i}, v{zb+32+i}")
            for G in range(4): e.ds(f"ds_write_b128 v5, {vr(zb+48+4*G)} offset:{T*4096 + G*1024}")
        if T: fin(T - 1)
    e("s_nop 15")
    fin(3)
    e.wait_lg0(); e("s_barrier")
    e(f"s_lshl_b32 s{sT0}, s{sW}, 12\nv_add_u32 v6, s{sT0}, v2\nv_add_u32 v7, {2*WREG}, v6")
    for G in range(4):
        for pl in range(4):
            e.ds(f"ds_read_b128 {vr(128 + 16*G + 4*pl)}, v{7 if pl >= 2 else 6} offset:{(pl&1)*WREG + G*1024}", ("zr", G))
    e("v_lshrrev_b32 v8, 5, v0\nv_lshlrev_b32 v8, 18, v8\nv_and_b32 v9, 31, v0\nv_lshl_add_u32 v8, v9, 4, v8")
    e(f"s_lshl_b32 s{sT0}, s{sRT}, 12\ns_lshl_b32 s{sT1}, s{sP}, 11\ns_add_u32 s{sT0}, s{sT0}, s{sT1}\ns_lshl_b32 s{sT1}, s{sW}, 9\ns_add_u32 s{sT0}, s{sT0}, s{sT1}\ns_add_u32 s{sT0}, s{sT0}, {ZOFF}")
    for G in range(4):
        e.wait_lg(("zr", G))
        b = 128 + 16 * G
        for a in range(4):
            for c in range(a + 1, 4): e(f"v_swap_b32 v{b+4*a+c}, v{b+4*c+a}")
        for j in range(4):
            e(f"s_add_u32 s{sT1}, s{sT0}, {(8*G + j) * 65536}")
            e.vmem(f"buffer_store_dwordx4 {vr(b+4*j)}, v8, {srd(SWS)}, s{sT1} offen sc1")
    e(f"s_lshl_b32 s{sFL}, s{sRT}, 1\ns_add_u32 s{sFL}, s{sFL}, s{sP}\ns_add_u32 s{sFL}, s{sFL}, 16\ns_lshl_b32 s{sFL}, s{sFL}, 2\ns_mov_b64 s[{sMK}:{sMK+1}], 0xffff")
    assert nst[0] == nst_save

    e("Lsignal:")
    e.wait_vm0(); e.lg = []
    stamp()
    e("s_barrier")
    e(f"s_cmp_lg_u32 s{sW}, 0\ns_cbranch_scc1 Lsigdone")
    e(f"s_mov_b32 s{sT3}, 0")
    e("Linitpoll:")
    e(f"v_readfirstlane_b32 s{sT0}, v4\ns_cmp_lg_u32 s{sT0}, 0\ns_cbranch_scc1 Linitok")
    e(f"s_add_u32 s{sT3}, s{sT3}, 1\ns_cmp_ge_u32 s{sT3}, 0x80000\ns_cbranch_scc1 Linitok")
    e(f"s_sleep 2\nbuffer_load_dword v4, v3, {srd(SDBG)}, 0 offen sc1\ns_waitcnt vmcnt(0)\ns_branch Linitpoll")
    e("Linitok:")
    e(f"v_lshlrev_b32 v5, 8, v0\nv_mov_b32 v6, 1\ns_add_u32 s{sFL}, s{sFL}, {FOFF}\ns_mov_b64 exec, s[{sMK}:{sMK+1}]")
    e(f"buffer_store_dword v6, v5, {srd(SWS)}, s{sFL} offen sc1\ns_mov_b64 exec, -1")
    e("Lsigdone:")
    e("v_lshrrev_b32 v6, 5, v0\nv_bfe_u32 v7, v0, 2, 2\nv_lshl_add_u32 v6, v6, 2, v7\nv_lshlrev_b32 v6, 6, v6")
    e(f"v_bfe_u32 v7, v0, 4, 1\nv_lshl_add_u32 v6, v7, 5, v6\nv_and_b32 v7, 3, v0\nv_lshl_add_u32 v19, v7, 3, v6\nv_add_u32 v19, s{sLB}, v19")
    def w2_read(j):
        for u in range(2):
            for hf in range(2):
                e.ds(f"ds_read_b64_tr_b16 {ar(8*j + 4*u + 2*hf, 2)}, v19 offset:{24576 + (j&7)*2048 + u*1024 + hf*512}", ("w2r", j))
    for j in range(8):
        w2_read(j)
        if j & 1:
            e.wait_lg0(); w2_dma(j + 7)(); w2_dma(j + 8)()
    e(f"s_lshr_b32 s{sT0}, s{sW}, 1\ns_lshl_b32 s{sT0}, s{sT0}, 5\ns_add_u32 s{sT0}, s{sT0}, s{sT1i}")
    e(f"v_and_b32 v6, 31, v0\nv_lshlrev_b32 v6, 6, v6\nv_add_u32 v6, s{sT0}, v6")
    e(f"s_and_b32 s{sT1}, s{sW}, 1\ns_lshl_b32 s{sT1}, s{sT1}, 5\ns_lshl_b32 s{sT2}, s{sNT}, 6\ns_add_u32 s{sT1}, s{sT1}, s{sT2}")
    e(f"s_lshl_b32 s{sXB}, s{sT1}, 1\nv_lshrrev_b32 v7, 5, v0\nv_lshlrev_b32 v21, 10, v6\nv_lshl_add_u32 v22, v7, 3, v21\nv_lshl_add_u32 v21, v7, 4, v21")
    for G in range(4): e.vmem(f"buffer_load_dwordx2 {vr(8+2*G,2)}, v22, {srd(SX)}, s{sXB} offen offset:{16*G}", "xres")
    e(f"v_and_b32 v23, 31, v0\nv_add_u32 v23, s{sT1}, v23")
    e(f"s_cmp_lt_u32 s{sNT}, 4\ns_cselect_b32 s{sT2}, -1, 1\ns_mul_i32 s{sT3}, s{sT2}, -256")
    e(f"v_mul_i32_i24 v23, s{sT2}, v23\nv_add_u32 v23, s{sT3}, v23")
    e(f"v_cmp_eq_u32 vcc, 256, v23\nv_and_b32 v24, 1, v23\nv_lshrrev_b32 v23, 1, v23\nv_lshlrev_b32 v23, 4, v23\nv_lshl_add_u32 v23, v24, 11, v23\nv_lshl_add_u32 v23, v7, 12, v23")
    e(f"v_mov_b32 v24, {BIG}\nv_cndmask_b32 v23, v23, v24, vcc")
    e(f"s_mul_i32 s{sZB}, s{sT1i}, s{sT2}\ns_and_b32 s{sZB}, s{sZB}, 31\ns_lshl_b32 s{sZB}, s{sZB}, 16\ns_add_u32 s{sZB}, s{sZB}, {ZOFF}")
    e(f"v_mul_i32_i24 v24, s{sT2}, v6\nv_cvt_f32_i32 v24, v24\nv_mul_f32 v24, 0x3a000000, v24\nv_lshlrev_b32 v25, 1, v7\nv_cvt_f32_u32 v25, v25\nv_mul_f32 v25, v25, v24")
    def a2(q):
        for j in range(4):
            e(f"v_mov_b32 v26, {float(4*q + (j&1) + 32*(j>>1))!r}\nv_fma_f32 v26, v26, v24, v25\nv_fract_f32 v26, v26\nv_cos_f32 v{128+2*j}, v26\nv_sin_f32 v{129+2*j}, v26")
        e("s_nop 0")
        for j in range(4): e(f"v_cvt_pk_bf16_f32 v{32+4*q+j}, v{128+2*j}, v{129+2*j}")
    for q in range(4): a2(q)
    for j in range(8, 16):
        e.wait_vm(("w2", j)); w2_read(j)
        if j & 1 and j + 8 < 22:
            e.wait_lg0(); w2_dma(j + 7)(); w2_dma(j + 8)()
    for q in range(4, 8): a2(q)
    e(f"s_mul_i32 s{sHB}, s{sT1i}, {HSTRIDE}\ns_lshl_b32 s{sT0}, s{sKB}, 11\ns_add_u32 s{sHB}, s{sHB}, s{sT0}\ns_lshr_b32 s{sT0}, s{sW}, 1\ns_lshl_b32 s{sT0}, s{sT0}, 10\ns_add_u32 s{sHB}, s{sHB}, s{sT0}")
    for a in range(1, 4):
        e(f"s_xor_b32 s{sT0}, s{sW}, {a}\ns_mul_i32 s{sT0}, s{sT0}, {WREG}\ns_add_u32 s{sT0}, s{sT0}, {(a-1)*4096}\nv_add_u32 v{25+a}, s{sT0}, v2")
    e(f"v_add_u32 v29, s{sLB}, v2")
    for j in range(16, 22):
        e.wait_vm(("w2", j)); w2_read(j)
    stamp()
    e(f"s_cmp_lg_u32 s{sW}, 0\ns_cbranch_scc1 Lpolldone")
    e(f"s_lshr_b32 s{sT0}, s{sT1i}, 1\ns_lshl_b32 s{sT0}, s{sT0}, 8\ns_add_u32 s{sT0}, s{sT0}, {FOFF}\nv_lshlrev_b32 v5, 2, v0")
    e(f"s_mov_b32 s{sMK}, 0xffff3fff\ns_mov_b32 s{sMK+1}, 0xffff")
    e(f"s_mov_b32 s{sT3}, 0")
    e("Lpoll:")
    e(f"s_add_u32 s{sT3}, s{sT3}, 1\ns_cmp_ge_u32 s{sT3}, 0x80000\ns_cbranch_scc1 Lpolldone")
    e(f"buffer_load_dword v4, v5, {srd(SWS)}, s{sT0} offen sc1\ns_waitcnt vmcnt(0)\nv_cmp_ne_u32 vcc, 0, v4\ns_nop 1")
    e(f"s_and_b64 vcc, vcc, s[{sMK}:{sMK+1}]\ns_cmp_eq_u64 vcc, s[{sMK}:{sMK+1}]\ns_cbranch_scc1 Lpolldone\ns_sleep 1\ns_branch Lpoll")
    e("Lpolldone:")
    e("s_barrier")
    stamp()
    RING = 12
    def h_load(j):
        e(f"s_add_u32 s{sT0}, s{sROT}, {j}\ns_sub_u32 s{sT1}, s{sT0}, 22\ns_cmp_ge_u32 s{sT0}, 22\ns_cselect_b32 s{sT0}, s{sT1}, s{sT0}")
        e(f"s_cmp_ge_u32 s{sT0}, s{sKC}\ns_cselect_b32 s{sT1}, {BIG}, 0\ns_lshl_b32 s{sT0}, s{sT0}, 11\ns_add_u32 s{sT0}, s{sT0}, s{sHB}\ns_add_u32 s{sT0}, s{sT0}, s{sT1}")
        b = 160 + 8 * (j % RING)
        e.vmem(f"buffer_load_dwordx4 {vr(b)}, v2, {srd(SWS)}, s{sT0} offen sc1", ("h", j))
        e(f"s_xor_b32 s{sT0}, s{sT0}, 1024")
        e.vmem(f"buffer_load_dwordx4 {vr(b+4)}, v2, {srd(SWS)}, s{sT0} offen sc1", ("h", j))
    LA = 6
    for j in range(3): h_load(j)
    for q in range(8):
        e(f"s_add_u32 s{sT0}, s{sZB}, {q*8192}")
        e.vmem(f"buffer_load_dwordx4 {ar(176+4*q)}, v23, {srd(SWS)}, s{sT0} offen sc1", ("Z", q))
    for j in range(3, LA): h_load(j)
    e.wait_lg0()
    for j in range(22):
        e.wait_vm(("h", j))
        b = 160 + 8 * (j % RING)
        for m in range(2):
            for u in range(2):
                acc = 64 + 16 * (u + 2 * m)
                e(f"v_mfma_f32_32x32x16_bf16 {vr(acc,16)}, {ar(8*j+4*u)}, {vr(b+4*m)}, {vr(acc,16) if j else 0}")
            if m == 0 and j + LA < 22: h_load(j + LA)
        if j == 3:
            for q in range(8):
                e(f"v_mfma_f32_32x32x16_bf16 v[136:151], {ar(176+4*q)}, {vr(32+4*q)}, {'v[136:151]' if q else 0}")
    stamp()
    e("s_nop 11")
    for a in (1, 2, 3):
        for G in range(4): e.ds(f"ds_write_b128 v{25+a}, {vr(64+16*a+4*G)} offset:{G*1024}")
    e.wait_lg0(); e("s_barrier")
    for a in range(3):
        for G in range(4): e.ds(f"ds_read_b128 {vr(80+16*a+4*G)}, v29 offset:{a*4096 + G*1024}", ("rr", a))
    for a in range(3):
        e.wait_lg(("rr", a))
        for i in range(16): e(f"v_add_f32 v{64+i}, v{64+i}, v{80+16*a+i}")
    silu_mul(64, 136, 80, 16)
    for d in range(8):
        e(f"v_lshlrev_b32 v{80+2*d}, 16, v{8+d}\nv_and_b32 v{81+2*d}, 0xffff0000, v{8+d}")
    for i in range(16): e(f"v_add_f32 v{64+i}, v{64+i}, v{80+i}")
    for d in range(8): e(f"v_cvt_pk_bf16_f32 v{96+d}, v{64+2*d}, v{65+2*d}")
    e("s_nop 1")
    e("v_permlane32_swap_b32 v96, v98\nv_permlane32_swap_b32 v97, v99\nv_permlane32_swap_b32 v100, v102\nv_permlane32_swap_b32 v101, v103")
    e(f"buffer_store_dwordx4 v[96:99], v21, {srd(SOUT)}, s{sXB} offen")
    e(f"buffer_store_dwordx4 v[100:103], v21, {srd(SOUT)}, s{sXB} offen offset:32")
    if stamps:
        e("s_waitcnt vmcnt(0)")
        stamp()
        e("s_waitcnt lgkmcnt(0)")
        n = nst[0]
        for i in range(1, n): e(f"s_sub_u32 s{sT0}, s{80+2*i}, s80\nv_writelane_b32 v4, s{sT0}, {i}")
        e(f"v_writelane_b32 v4, s78, 0\ns_lshl_b32 s{sT0}, s2, 2\ns_add_u32 s{sT0}, s{sT0}, s{sW}\ns_lshl_b32 s{sT0}, s{sT0}, 6\ns_add_u32 s{sT0}, s{sT0}, {TOFF}")
        e(f"v_lshlrev_b32 v5, 2, v0\ns_mov_b64 exec, 0xffff\nbuffer_store_dword v4, v5, {srd(SWS)}, s{sT0} offen")
    e("Lend:\ns_endpgm")
    e(f'.section .rodata,"a"\n.p2align 6\n.amdhsa_kernel {NAME}_kernel\n  .amdhsa_next_free_vgpr 512\n  .amdhsa_next_free_sgpr 102\n  .amdhsa_accum_offset 256\n  .amdhsa_group_segment_fixed_size 0\n  .amdhsa_kernarg_size 96\n  .amdhsa_user_sgpr_count 2\n  .amdhsa_user_sgpr_kernarg_segment_ptr 1\n  .amdhsa_system_sgpr_workgroup_id_x 1\n.end_amdhsa_kernel')
    return "\n".join(e.L) + "\n"

if __name__ == "__main__":
    kw = {}
    for a in sys.argv[2:]:
        k, v = a.split("="); kw[k] = int(v)
    open(sys.argv[1], "w").write(gen(**kw))
```
